```python
import torch

def _softmax(x, axis=-1):
    return torch.softmax(x, dim=axis)
def _gelu(x):
    return torch.nn.functional.gelu(x, approximate="tanh")
def _silu(x):
    return torch.nn.functional.silu(x)
def _sigmoid(x):
    return torch.sigmoid(x)
def _layernorm(x, axis=-1, eps=1e-5):
    m = x.mean(dim=axis, keepdim=True)
    v = x.var(dim=axis, keepdim=True, unbiased=False)
    return (x - m) / torch.sqrt(v + eps)
def _scatter_add(tgt, idx, src, axis=0):
    return tgt.clone().index_add_(axis, idx, src)
def _segment_sum(src, seg, n):
    out = torch.zeros((n,) + src.shape[1:], dtype=src.dtype)
    return out.index_add_(0, seg, src)
def _pad(x, pw):
    flat = tuple(v for pair in reversed(pw) for v in pair)
    return torch.nn.functional.pad(x, flat)

kernel_name = 'standalone__groupnorm__sampling'

def setup_inputs():

    _w = (lambda a: (lambda t: t.to(torch.bfloat16) if t.is_floating_point() else t)(torch.as_tensor(a)))
    B = 32
    G = 32
    cpg = max(1, 512 // G)
    C = G * cpg
    H, W = 32, 16
    return {
        "x": _w(abs((lambda *s: torch.randn(*s, dtype=torch.bfloat16) * 0.05)(B, C, H, W))),
        "g": _w((lambda *s: torch.randn(*s, dtype=torch.bfloat16) * 0.05)(C) + 1.0),
        "b": _w((lambda *s: torch.randn(*s, dtype=torch.bfloat16) * 0.4)(C)),
    }

def reference(x, g, b):
    G = 32
    B, C, H, W = x.shape[0], x.shape[1], x.shape[2], x.shape[3]
    xr = x.reshape(B, G, C // G, H, W)
    mu = xr.mean(axis=(2, 3, 4), keepdims=True)
    var = ((xr - mu) ** 2).mean(axis=(2, 3, 4), keepdims=True)
    xn = (xr - mu) / torch.sqrt(var + 1e-5)
    xn = xn.reshape(B, C, H, W)
    return xn * g[None, :, None, None] + b[None, :, None, None]
```

```python
import sys

NAME = "standalone__groupnorm__sampling"

HEADER = """; Kernarg layout for this problem (48 bytes, ptrs only, base s[0:1]):
"""


def gen(ld="", st="", emulate=True):
    L = []
    a = L.append
    a(HEADER.rstrip())
    a("; @launch grid=(1024,1,1) block=(256,1,1) lds=64")
    a('.amdgcn_target "amdgcn-amd-amdhsa--gfx950"')
    a(".text")
    a(f".globl {NAME}_kernel")
    a(".p2align 8")
    a(f".type {NAME}_kernel,@function")
    a(f"{NAME}_kernel:")
    a("  s_cmp_ge_u32 s2, 0x400")
    a("  s_cbranch_scc1 L_end")
    a("  s_load_dwordx2 s[12:13], s[0:1], 0")
    a("  s_load_dwordx4 s[4:7], s[0:1], 8")
    a("  s_load_dwordx2 s[16:17], s[0:1], 24")
    a("  v_readfirstlane_b32 s3, v0")
    a("  v_and_b32 v1, 63, v0")
    a("  v_lshlrev_b32 v1, 4, v1")
    a("  s_mov_b32 s14, 0x1000000")
    a("  s_mov_b32 s15, 0x20000")
    a("  s_mov_b32 s18, 0x1000000")
    a("  s_mov_b32 s19, 0x20000")
    a("  s_lshl_b32 s20, s2, 14")
    a("  s_lshl_b32 s21, s3, 6")
    a("  s_add_u32 s20, s20, s21")
    a("  s_and_b32 s22, s2, 31")
    a("  s_lshl_b32 s22, s22, 5")
    a("  s_lshr_b32 s23, s3, 3")
    a("  s_add_u32 s22, s22, s23")
    a("  s_waitcnt lgkmcnt(0)")
    raw = [4, 8, 12, 16]
    for j in range(4):
        off = f" offset:{j*1024}" if j else ""
        a(f"  buffer_load_dwordx4 v[{raw[j]}:{raw[j]+3}], v1, s[12:15], s20 offen{off}{ld}")
    a("  s_load_dwordx2 s[24:25], s[4:5], s22")
    a("  s_load_dwordx2 s[26:27], s[6:7], s22")
    a("  s_mov_b32 s28, 0x3f803f80")
    a("  v_mov_b32 v2, 0")
    a("  v_mov_b32 v3, 0")
    a("  v_mov_b32 v20, 0")
    a("  v_mov_b32 v21, 0")
    a("  v_mov_b32 v22, s23")
    a("  v_mov_b32 v23, 0")
    a("  s_mov_b32 s30, 0")
    a("  s_mov_b32 s31, 0x80000000")
    a("  s_waitcnt lgkmcnt(0)")
    a("  s_lshl_b32 s32, s24, 16")
    a("  s_and_b32 s33, s24, 0xffff0000")
    a("  s_lshl_b32 s34, s25, 16")
    a("  s_and_b32 s35, s25, 0xffff0000")
    a("  s_lshl_b32 s36, s26, 16")
    a("  s_and_b32 s37, s26, 0xffff0000")
    a("  s_lshl_b32 s38, s27, 16")
    a("  s_and_b32 s39, s27, 0xffff0000")
    for j in range(4):
        a(f"  s_waitcnt vmcnt({3-j})")
        for k in range(4):
            r = raw[j] + k
            s1, s2 = (2, 3) if k % 2 == 0 else (20, 21)
            a(f"  v_dot2c_f32_bf16 v{s1}, s28, v{r}")
            a(f"  v_dot2c_f32_bf16 v{s2}, v{r}, v{r}")
    fill = []
    for j in range(4):
        for k in range(4):
            r = raw[j] + k
            d = 24 + (j * 4 + k) * 2
            fill.append(f"  v_lshlrev_b32 v{d}, 16, v{r}")
            fill.append(f"  v_and_b32 v{d+1}, 0xffff0000, v{r}")
    fi = [0]

    def F(n):
        for _ in range(n):
            if fi[0] < len(fill):
                a(fill[fi[0]])
                fi[0] += 1
            else:
                a("  s_nop 0")

    F(3)
    a("  v_add_f32 v2, v2, v20")
    a("  v_add_f32 v3, v3, v21")
    a("  v_readfirstlane_b32 s29, v2")
    a("  v_mul_f32 v20, 0x3d000000, v2")
    a("  v_fma_f32 v3, -v20, v2, v3")
    a("  v_subrev_f32 v2, s29, v2")
    a("  v_mul_f32 v20, 0x3d000000, v2")
    a("  v_fmac_f32 v3, v20, v2")
    F(2)
    a("  v_permlane32_swap_b32 v2, v3")
    a("  v_add_f32 v2, v2, v3")
    for ctl in ["quad_perm:[1,0,3,2] row_mask:0xf bank_mask:0xf",
                "quad_perm:[2,3,0,1] row_mask:0xf bank_mask:0xf",
                "row_half_mirror row_mask:0xf bank_mask:0xf",
                "row_mirror row_mask:0xf bank_mask:0xf",
                "row_bcast:15 row_mask:0xa bank_mask:0xf"]:
        F(2)
        a(f"  v_add_f32_dpp v2, v2, v2 {ctl}")
    F(2)
    a("  v_mov_b32_dpp v20, v2 row_bcast:31 row_mask:0xc bank_mask:0xf")
    a("  v_mov_b32 v21, 0x42800000")
    a("  v_mul_f32 v3, 0x3a000000, v20")
    a("  v_fma_f32 v3, -v3, v20, v2")
    a("  v_fma_f32 v2, s29, v21, v20")
    a("  s_mov_b64 exec, s[30:31]")
    a("  ds_write_b64 v22, v[2:3]")
    a("  s_mov_b64 exec, -1")
    a("  s_waitcnt lgkmcnt(0)")
    a("  s_barrier")
    a("  ds_read_b128 v[56:59], v23")
    a("  ds_read_b128 v[60:63], v23 offset:16")
    F(32 - fi[0])
    a("  s_waitcnt lgkmcnt(0)")
    a("  v_pk_add_f32 v[2:3], v[56:57], v[58:59]")
    a("  v_pk_add_f32 v[20:21], v[60:61], v[62:63]")
    a("  v_pk_add_f32 v[2:3], v[2:3], v[20:21]")
    a("  v_mul_f32 v20, 0.25, v2") if False else a("  v_mul_f32 v20, 0x3e800000, v2")
    a("  v_sub_f32 v56, v56, v20")
    a("  v_sub_f32 v58, v58, v20")
    a("  v_sub_f32 v60, v60, v20")
    a("  v_sub_f32 v62, v62, v20")
    a("  v_mul_f32 v21, v56, v56")
    a("  v_mul_f32 v22, v60, v60")
    a("  v_fmac_f32 v21, v58, v58")
    a("  v_fmac_f32 v22, v62, v62")
    a("  v_mul_f32 v2, 0x39000000, v2")
    a("  v_add_f32 v21, v21, v22")
    a("  v_fmac_f32 v3, 0x3a000000, v21")
    a("  v_mul_f32 v3, 0x39000000, v3")
    if emulate:
        a("  v_cvt_pk_bf16_f32 v20, 0, v2")
        a("  v_sub_f32 v21, v2, v20")
        a("  v_fmac_f32 v3, v21, v21")
        a("  v_cvt_pk_bf16_f32 v3, 0, v3")
        a("  v_add_f32 v3, 0x3727c5ac, v3")
        a("  v_cvt_pk_bf16_f32 v3, 0, v3")
        a("  v_sqrt_f32 v3, v3")
        a("  s_nop 0")
        a("  v_cvt_pk_bf16_f32 v3, 0, v3")
        a("  v_rcp_f32 v3, v3")
        a("  s_nop 0")
    else:
        a("  v_mov_b32 v20, v2")
        a("  v_add_f32 v3, 0x3727c5ac, v3")
        a("  v_rsq_f32 v3, v3")
        a("  s_nop 0")
    for j in range(4):
        a(f"  v_mul_f32 v{56+2*j}, s{32+j}, v3")
    for j in range(4):
        a(f"  v_fma_f32 v{57+2*j}, -v20, v{56+2*j}, s{36+j}")
    for j in range(4):
        ab = 56 + 2 * j
        for k in range(4):
            d = 24 + (j * 4 + k) * 2
            a(f"  v_pk_fma_f32 v[{d}:{d+1}], v[{d}:{d+1}], v[{ab}:{ab+1}], v[{ab}:{ab+1}] op_sel:[0,0,1] op_sel_hi:[1,0,1]")
        for k in range(4):
            d = 24 + (j * 4 + k) * 2
            a(f"  v_cvt_pk_bf16_f32 v{raw[j]+k}, v{d}, v{d+1}")
        off = f" offset:{j*1024}" if j else ""
        a(f"  buffer_store_dwordx4 v[{raw[j]}:{raw[j]+3}], v1, s[16:19], s20 offen{off}{st}")
    a("L_end:")
    a("  s_endpgm")
    a('.section .rodata,"a"')
    a(".p2align 6")
    a(f".amdhsa_kernel {NAME}_kernel")
    a("  .amdhsa_next_free_vgpr 64")
    a("  .amdhsa_next_free_sgpr 40")
    a("  .amdhsa_accum_offset 64")
    a("  .amdhsa_group_segment_fixed_size 0")
    a("  .amdhsa_kernarg_size 48")
    a("  .amdhsa_user_sgpr_count 2")
    a("  .amdhsa_user_sgpr_kernarg_segment_ptr 1")
    a("  .amdhsa_system_sgpr_workgroup_id_x 1")
    a(".end_amdhsa_kernel")
    return "\n".join(L) + "\n"


if __name__ == "__main__":
    out = "var/"
    open(out + "a_plain.s", "w").write(gen())
    open(out + "a_noemu.s", "w").write(gen(emulate=False))
    open(out + "a_st_nt.s", "w").write(gen(st=" nt"))
    open(out + "a_st_sc1.s", "w").write(gen(st=" sc1"))
    open(out + "a_st_sc0sc1.s", "w").write(gen(st=" sc0 sc1"))
    open(out + "a_ldnt_stnt.s", "w").write(gen(ld=" nt", st=" nt"))
```

```python
import sys

NAME = "standalone__groupnorm__sampling"

HEADER = """; Kernarg layout for this problem (48 bytes, ptrs only, base s[0:1]):
"""


def gen(ld="", st="", emulate=True, diag=False):
    L = []
    a = L.append
    a(HEADER.rstrip())
    a("; @launch grid=(1024,1,1) block=(256,1,1) lds=64")
    a('.amdgcn_target "amdgcn-amd-amdhsa--gfx950"')
    a(".text")
    a(f".globl {NAME}_kernel")
    a(".p2align 8")
    a(f".type {NAME}_kernel,@function")
    a(f"{NAME}_kernel:")
    def T(i):
        if diag:
            a(f"  s_memrealtime s[{44+2*i}:{45+2*i}]")
    a("  s_cmp_ge_u32 s2, 0x400")
    a("  s_cbranch_scc1 L_end")
    T(0)
    a("  s_load_dwordx2 s[12:13], s[0:1], 0")
    a("  s_load_dwordx4 s[4:7], s[0:1], 8")
    a("  s_load_dwordx2 s[16:17], s[0:1], 24")
    a("  v_readfirstlane_b32 s3, v0")
    a("  v_and_b32 v1, 63, v0")
    a("  v_lshlrev_b32 v1, 4, v1")
    a("  s_mov_b32 s14, 0x1000000")
    a("  s_mov_b32 s15, 0x20000")
    a("  s_mov_b32 s18, 0x1000000")
    a("  s_mov_b32 s19, 0x20000")
    a("  s_lshl_b32 s20, s2, 14")
    a("  s_lshl_b32 s21, s3, 6")
    a("  s_add_u32 s20, s20, s21")
    a("  s_and_b32 s22, s2, 31")
    a("  s_lshl_b32 s22, s22, 5")
    a("  s_lshr_b32 s23, s3, 3")
    a("  s_add_u32 s22, s22, s23")
    a("  s_waitcnt lgkmcnt(0)")
    T(1)
    raw = [4, 8, 12, 16]
    for j in range(4):
        off = f" offset:{j*1024}" if j else ""
        a(f"  buffer_load_dwordx4 v[{raw[j]}:{raw[j]+3}], v1, s[12:15], s20 offen{off}{ld}")
    a("  s_load_dwordx2 s[24:25], s[4:5], s22")
    a("  s_load_dwordx2 s[26:27], s[6:7], s22")
    a("  s_mov_b32 s28, 0x3f803f80")
    a("  v_mov_b32 v2, 0")
    a("  v_mov_b32 v3, 0")
    a("  v_mov_b32 v20, 0")
    a("  v_mov_b32 v21, 0")
    a("  v_mov_b32 v22, s23")
    a("  v_mov_b32 v23, 0")
    a("  s_mov_b32 s30, 0")
    a("  s_mov_b32 s31, 0x80000000")
    a("  s_waitcnt lgkmcnt(0)")
    T(2)
    a("  s_lshl_b32 s32, s24, 16")
    a("  s_and_b32 s33, s24, 0xffff0000")
    a("  s_lshl_b32 s34, s25, 16")
    a("  s_and_b32 s35, s25, 0xffff0000")
    a("  s_lshl_b32 s36, s26, 16")
    a("  s_and_b32 s37, s26, 0xffff0000")
    a("  s_lshl_b32 s38, s27, 16")
    a("  s_and_b32 s39, s27, 0xffff0000")
    for j in range(4):
        a(f"  s_waitcnt vmcnt({3-j})")
        if j == 0:
            T(3)
        if j == 3:
            T(4)
        for k in range(4):
            r = raw[j] + k
            s1, s2 = (2, 3) if k % 2 == 0 else (20, 21)
            a(f"  v_dot2c_f32_bf16 v{s1}, s28, v{r}")
            a(f"  v_dot2c_f32_bf16 v{s2}, v{r}, v{r}")
    fill = []
    for j in range(4):
        for k in range(4):
            r = raw[j] + k
            d = 24 + (j * 4 + k) * 2
            fill.append(f"  v_lshlrev_b32 v{d}, 16, v{r}")
            fill.append(f"  v_and_b32 v{d+1}, 0xffff0000, v{r}")
    fi = [0]

    def F(n):
        for _ in range(n):
            if fi[0] < len(fill):
                a(fill[fi[0]])
                fi[0] += 1
            else:
                a("  s_nop 0")

    F(3)
    a("  v_add_f32 v2, v2, v20")
    a("  v_add_f32 v3, v3, v21")
    a("  v_readfirstlane_b32 s29, v2")
    a("  v_mul_f32 v20, 0x3d000000, v2")
    a("  v_fma_f32 v3, -v20, v2, v3")
    a("  v_subrev_f32 v2, s29, v2")
    a("  v_mul_f32 v20, 0x3d000000, v2")
    a("  v_fmac_f32 v3, v20, v2")
    F(2)
    a("  v_permlane32_swap_b32 v2, v3")
    a("  v_add_f32 v2, v2, v3")
    for ctl in ["quad_perm:[1,0,3,2] row_mask:0xf bank_mask:0xf",
                "quad_perm:[2,3,0,1] row_mask:0xf bank_mask:0xf",
                "row_half_mirror row_mask:0xf bank_mask:0xf",
                "row_mirror row_mask:0xf bank_mask:0xf",
                "row_bcast:15 row_mask:0xa bank_mask:0xf"]:
        F(2)
        a(f"  v_add_f32_dpp v2, v2, v2 {ctl}")
    F(2)
    a("  v_mov_b32_dpp v20, v2 row_bcast:31 row_mask:0xc bank_mask:0xf")
    a("  v_mov_b32 v21, 0x42800000")
    a("  v_mul_f32 v3, 0x3a000000, v20")
    a("  v_fma_f32 v3, -v3, v20, v2")
    a("  v_fma_f32 v2, s29, v21, v20")
    a("  s_mov_b64 exec, s[30:31]")
    a("  ds_write_b64 v22, v[2:3]")
    a("  s_mov_b64 exec, -1")
    a("  s_waitcnt lgkmcnt(0)")
    a("  s_barrier")
    T(5)
    a("  ds_read_b128 v[56:59], v23")
    a("  ds_read_b128 v[60:63], v23 offset:16")
    F(32 - fi[0])
    a("  s_waitcnt lgkmcnt(0)")
    a("  v_pk_add_f32 v[2:3], v[56:57], v[58:59]")
    a("  v_pk_add_f32 v[20:21], v[60:61], v[62:63]")
    a("  v_pk_add_f32 v[2:3], v[2:3], v[20:21]")
    a("  v_mul_f32 v20, 0.25, v2") if False else a("  v_mul_f32 v20, 0x3e800000, v2")
    a("  v_sub_f32 v56, v56, v20")
    a("  v_sub_f32 v58, v58, v20")
    a("  v_sub_f32 v60, v60, v20")
    a("  v_sub_f32 v62, v62, v20")
    a("  v_mul_f32 v21, v56, v56")
    a("  v_mul_f32 v22, v60, v60")
    a("  v_fmac_f32 v21, v58, v58")
    a("  v_fmac_f32 v22, v62, v62")
    a("  v_mul_f32 v2, 0x39000000, v2")
    a("  v_add_f32 v21, v21, v22")
    a("  v_fmac_f32 v3, 0x3a000000, v21")
    a("  v_mul_f32 v3, 0x39000000, v3")
    if emulate:
        a("  v_cvt_pk_bf16_f32 v20, 0, v2")
        a("  v_sub_f32 v21, v2, v20")
        a("  v_fmac_f32 v3, v21, v21")
        a("  v_cvt_pk_bf16_f32 v3, 0, v3")
        a("  v_add_f32 v3, 0x3727c5ac, v3")
        a("  v_cvt_pk_bf16_f32 v3, 0, v3")
        a("  v_sqrt_f32 v3, v3")
        a("  s_nop 0")
        a("  v_cvt_pk_bf16_f32 v3, 0, v3")
        a("  v_rcp_f32 v3, v3")
        a("  s_nop 0")
    else:
        a("  v_mov_b32 v20, v2")
        a("  v_add_f32 v3, 0x3727c5ac, v3")
        a("  v_rsq_f32 v3, v3")
        a("  s_nop 0")
    for j in range(4):
        a(f"  v_mul_f32 v{56+2*j}, s{32+j}, v3")
    for j in range(4):
        a(f"  v_fma_f32 v{57+2*j}, -v20, v{56+2*j}, s{36+j}")
    for j in range(4):
        ab = 56 + 2 * j
        for k in range(4):
            d = 24 + (j * 4 + k) * 2
            a(f"  v_pk_fma_f32 v[{d}:{d+1}], v[{d}:{d+1}], v[{ab}:{ab+1}], v[{ab}:{ab+1}] op_sel:[0,0,1] op_sel_hi:[1,0,1]")
        for k in range(4):
            d = 24 + (j * 4 + k) * 2
            a(f"  v_cvt_pk_bf16_f32 v{raw[j]+k}, v{d}, v{d+1}")
        off = f" offset:{j*1024}" if j else ""
        a(f"  buffer_store_dwordx4 v[{raw[j]}:{raw[j]+3}], v1, s[16:19], s20 offen{off}{st}")
    if diag:
        T(6)
        a("  s_waitcnt vmcnt(0)")
        T(7)
        a("  s_load_dwordx4 s[60:63], s[0:1], 32")
        a("  s_waitcnt lgkmcnt(0)")
        a("  s_not_b32 s64, s44")
        a("  v_writelane_b32 v2, s64, 0")
        for lane, t in [(1, 0), (2, 1), (3, 3), (4, 4), (5, 5), (6, 6), (7, 7)]:
            a(f"  v_writelane_b32 v2, s{44+2*t}, {lane}")
        for i in range(7):
            a(f"  s_sub_u32 s64, s{46+2*i}, s{44+2*i}")
            a(f"  v_writelane_b32 v2, s64, {8+i}")
        a("  s_not_b32 s64, s52")
        a("  v_writelane_b32 v2, s64, 15")
        for i in range(8):
            a(f"  v_writelane_b32 v3, s{44+2*i}, {i}")
        a("  v_and_b32 v4, 63, v0")
        a("  v_lshlrev_b32 v4, 2, v4")
        a("  s_mov_b64 exec, 0x80ff")
        a("  global_atomic_umax v4, v2, s[60:61]")
        a("  s_mov_b64 exec, 0x7f00")
        a("  global_atomic_add v4, v2, s[60:61]")
        a("  s_mov_b64 exec, 0xff")
        a("  s_lshl_b32 s64, s2, 7")
        a("  s_lshr_b32 s65, s3, 1")
        a("  s_add_u32 s64, s64, s65")
        a("  v_add_u32 v4, s64, v4")
        a("  global_store_dword v4, v3, s[62:63]")
    a("L_end:")
    a("  s_endpgm")
    a('.section .rodata,"a"')
    a(".p2align 6")
    a(f".amdhsa_kernel {NAME}_kernel")
    a("  .amdhsa_next_free_vgpr 64")
    a(f"  .amdhsa_next_free_sgpr {72 if diag else 40}")
    a("  .amdhsa_accum_offset 64")
    a("  .amdhsa_group_segment_fixed_size 0")
    a("  .amdhsa_kernarg_size 48")
    a("  .amdhsa_user_sgpr_count 2")
    a("  .amdhsa_user_sgpr_kernarg_segment_ptr 1")
    a("  .amdhsa_system_sgpr_workgroup_id_x 1")
    a(".end_amdhsa_kernel")
    return "\n".join(L) + "\n"


if __name__ == "__main__":
    out = "var/"
    open(out + "a_plain.s", "w").write(gen())
    open(out + "a_noemu.s", "w").write(gen(emulate=False))
    open(out + "a_st_nt.s", "w").write(gen(st=" nt"))
    open(out + "a_st_sc1.s", "w").write(gen(st=" sc1"))
    open(out + "a_st_sc0sc1.s", "w").write(gen(st=" sc0 sc1"))
    open(out + "a_ldnt_stnt.s", "w").write(gen(ld=" nt", st=" nt"))
    open(out + "d_plain.s", "w").write(gen(diag=True))
    open(out + "d_st_nt.s", "w").write(gen(st=" nt", diag=True))
```

```python
import sys

NAME = "standalone__groupnorm__sampling"

HEADER = """; Kernarg layout for this problem (48 bytes, ptrs only, base s[0:1]):
"""


def gen(ld="", st="", emulate=True, diag=False):
    L = []
    a = L.append
    a(HEADER.rstrip())
    a("; @launch grid=(1024,1,1) block=(256,1,1) lds=64")
    a('.amdgcn_target "amdgcn-amd-amdhsa--gfx950"')
    a(".text")
    a(f".globl {NAME}_kernel")
    a(".p2align 8")
    a(f".type {NAME}_kernel,@function")
    a(f"{NAME}_kernel:")
    def T(i):
        if diag:
            a(f"  s_memrealtime s[{44+2*i}:{45+2*i}]")
    a("  s_cmp_ge_u32 s2, 0x400")
    a("  s_cbranch_scc1 L_end")
    T(0)
    a("  s_load_dwordx2 s[12:13], s[0:1], 0")
    a("  s_load_dwordx4 s[4:7], s[0:1], 8")
    a("  s_load_dwordx2 s[16:17], s[0:1], 24")
    a("  v_readfirstlane_b32 s3, v0")
    a("  v_and_b32 v1, 63, v0")
    a("  v_lshlrev_b32 v1, 4, v1")
    a("  s_mov_b32 s14, 0x1000000")
    a("  s_mov_b32 s15, 0x20000")
    a("  s_mov_b32 s18, 0x1000000")
    a("  s_mov_b32 s19, 0x20000")
    a("  s_lshl_b32 s20, s2, 14")
    a("  s_lshl_b32 s21, s3, 6")
    a("  s_add_u32 s20, s20, s21")
    a("  s_and_b32 s22, s2, 31")
    a("  s_lshl_b32 s22, s22, 5")
    a("  s_lshr_b32 s23, s3, 3")
    a("  s_add_u32 s22, s22, s23")
    a("  s_waitcnt lgkmcnt(0)")
    T(1)
    raw = [4, 8, 12, 16]
    for j in range(4):
        off = f" offset:{j*1024}" if j else ""
        a(f"  buffer_load_dwordx4 v[{raw[j]}:{raw[j]+3}], v1, s[12:15], s20 offen{off}{ld}")
    a("  s_load_dwordx2 s[24:25], s[4:5], s22")
    a("  s_load_dwordx2 s[26:27], s[6:7], s22")
    a("  s_mov_b32 s28, 0x3f803f80")
    a("  v_mov_b32 v2, 0")
    a("  v_mov_b32 v3, 0")
    a("  v_mov_b32 v20, 0")
    a("  v_mov_b32 v21, 0")
    a("  v_mov_b32 v22, s23")
    a("  v_mov_b32 v23, 0")
    a("  s_mov_b32 s30, 0")
    a("  s_mov_b32 s31, 0x80000000")
    a("  s_waitcnt lgkmcnt(0)")
    T(2)
    a("  s_lshl_b32 s32, s24, 16")
    a("  s_and_b32 s33, s24, 0xffff0000")
    a("  s_lshl_b32 s34, s25, 16")
    a("  s_and_b32 s35, s25, 0xffff0000")
    a("  s_lshl_b32 s36, s26, 16")
    a("  s_and_b32 s37, s26, 0xffff0000")
    a("  s_lshl_b32 s38, s27, 16")
    a("  s_and_b32 s39, s27, 0xffff0000")
    for j in range(4):
        a(f"  s_waitcnt vmcnt({3-j})")
        if j == 0:
            T(3)
        if j == 3:
            T(4)
        for k in range(4):
            r = raw[j] + k
            s1, s2 = (2, 3) if k % 2 == 0 else (20, 21)
            a(f"  v_dot2c_f32_bf16 v{s1}, s28, v{r}")
            a(f"  v_dot2c_f32_bf16 v{s2}, v{r}, v{r}")
    fill = []
    for j in range(4):
        for k in range(4):
            r = raw[j] + k
            d = 24 + (j * 4 + k) * 2
            fill.append(f"  v_lshlrev_b32 v{d}, 16, v{r}")
            fill.append(f"  v_and_b32 v{d+1}, 0xffff0000, v{r}")
    fi = [0]

    def F(n):
        for _ in range(n):
            if fi[0] < len(fill):
                a(fill[fi[0]])
                fi[0] += 1
            else:
                a("  s_nop 0")

    F(3)
    a("  v_add_f32 v2, v2, v20")
    a("  v_add_f32 v3, v3, v21")
    a("  v_readfirstlane_b32 s29, v2")
    a("  v_mul_f32 v20, 0x3d000000, v2")
    a("  v_fma_f32 v3, -v20, v2, v3")
    a("  v_subrev_f32 v2, s29, v2")
    a("  v_mul_f32 v20, 0x3d000000, v2")
    a("  v_fmac_f32 v3, v20, v2")
    F(2)
    a("  v_permlane32_swap_b32 v2, v3")
    a("  v_add_f32 v2, v2, v3")
    for ctl in ["quad_perm:[1,0,3,2] row_mask:0xf bank_mask:0xf",
                "quad_perm:[2,3,0,1] row_mask:0xf bank_mask:0xf",
                "row_half_mirror row_mask:0xf bank_mask:0xf",
                "row_mirror row_mask:0xf bank_mask:0xf",
                "row_bcast:15 row_mask:0xa bank_mask:0xf"]:
        F(2)
        a(f"  v_add_f32_dpp v2, v2, v2 {ctl}")
    F(2)
    a("  v_mov_b32_dpp v20, v2 row_bcast:31 row_mask:0xc bank_mask:0xf")
    a("  v_mov_b32 v21, 0x42800000")
    a("  v_mul_f32 v3, 0x3a000000, v20")
    a("  v_fma_f32 v3, -v3, v20, v2")
    a("  v_fma_f32 v2, s29, v21, v20")
    a("  s_mov_b64 exec, s[30:31]")
    a("  ds_write_b64 v22, v[2:3]")
    a("  s_mov_b64 exec, -1")
    a("  s_waitcnt lgkmcnt(0)")
    a("  s_barrier")
    T(5)
    a("  ds_read_b128 v[56:59], v23")
    a("  ds_read_b128 v[60:63], v23 offset:16")
    F(32 - fi[0])
    a("  s_waitcnt lgkmcnt(0)")
    a("  v_pk_add_f32 v[2:3], v[56:57], v[58:59]")
    a("  v_pk_add_f32 v[20:21], v[60:61], v[62:63]")
    a("  v_pk_add_f32 v[2:3], v[2:3], v[20:21]")
    a("  v_mul_f32 v20, 0.25, v2") if False else a("  v_mul_f32 v20, 0x3e800000, v2")
    a("  v_sub_f32 v56, v56, v20")
    a("  v_sub_f32 v58, v58, v20")
    a("  v_sub_f32 v60, v60, v20")
    a("  v_sub_f32 v62, v62, v20")
    a("  v_mul_f32 v21, v56, v56")
    a("  v_mul_f32 v22, v60, v60")
    a("  v_fmac_f32 v21, v58, v58")
    a("  v_fmac_f32 v22, v62, v62")
    a("  v_mul_f32 v2, 0x39000000, v2")
    a("  v_add_f32 v21, v21, v22")
    a("  v_fmac_f32 v3, 0x3a000000, v21")
    a("  v_mul_f32 v3, 0x39000000, v3")
    if emulate:
        a("  v_cvt_pk_bf16_f32 v20, 0, v2")
        a("  v_sub_f32 v21, v2, v20")
        a("  v_fmac_f32 v3, v21, v21")
        a("  v_cvt_pk_bf16_f32 v3, 0, v3")
        a("  v_add_f32 v3, 0x3727c5ac, v3")
        a("  v_cvt_pk_bf16_f32 v3, 0, v3")
        a("  v_sqrt_f32 v3, v3")
        a("  s_nop 0")
        a("  v_cvt_pk_bf16_f32 v3, 0, v3")
        a("  v_rcp_f32 v3, v3")
        a("  s_nop 0")
    else:
        a("  v_mov_b32 v20, v2")
        a("  v_add_f32 v3, 0x3727c5ac, v3")
        a("  v_rsq_f32 v3, v3")
        a("  s_nop 0")
    for j in range(4):
        a(f"  v_mul_f32 v{56+2*j}, s{32+j}, v3")
    for j in range(4):
        a(f"  v_fma_f32 v{57+2*j}, -v20, v{56+2*j}, s{36+j}")
    for j in range(4):
        ab = 56 + 2 * j
        for k in range(4):
            d = 24 + (j * 4 + k) * 2
            a(f"  v_pk_fma_f32 v[{d}:{d+1}], v[{d}:{d+1}], v[{ab}:{ab+1}], v[{ab}:{ab+1}] op_sel:[0,0,1] op_sel_hi:[1,0,1]")
        for k in range(4):
            d = 24 + (j * 4 + k) * 2
            a(f"  v_cvt_pk_bf16_f32 v{raw[j]+k}, v{d}, v{d+1}")
        off = f" offset:{j*1024}" if j else ""
        a(f"  buffer_store_dwordx4 v[{raw[j]}:{raw[j]+3}], v1, s[16:19], s20 offen{off}{st}")
    if diag:
        T(6)
        a("  s_waitcnt vmcnt(0)")
        T(7)
        a("  s_load_dwordx4 s[60:63], s[0:1], 32")
        a("  s_waitcnt lgkmcnt(0)")
        a("  s_not_b32 s64, s44")
        a("  v_writelane_b32 v2, s64, 0")
        for lane, t in [(1, 0), (2, 1), (3, 3), (4, 4), (5, 5), (6, 6), (7, 7)]:
            a(f"  v_writelane_b32 v2, s{44+2*t}, {lane}")
        for i in range(7):
            a(f"  s_sub_u32 s64, s{46+2*i}, s{44+2*i}")
            a(f"  v_writelane_b32 v2, s64, {8+i}")
        a("  s_not_b32 s64, s52")
        a("  v_writelane_b32 v2, s64, 15")
        for i in range(8):
            a(f"  v_writelane_b32 v3, s{44+2*i}, {i}")
        a("  v_and_b32 v4, 63, v0")
        a("  v_lshlrev_b32 v4, 2, v4")
        if diag == 1:
            a("  s_mov_b64 exec, 0x80ff")
            a("  global_atomic_umax v4, v2, s[60:61]")
            a("  s_mov_b64 exec, 0x7f00")
            a("  global_atomic_add v4, v2, s[60:61]")
        a("  s_mov_b64 exec, 0xff")
        a("  s_lshl_b32 s64, s2, 7")
        a("  s_lshr_b32 s65, s3, 1")
        a("  s_add_u32 s64, s64, s65")
        a("  v_add_u32 v4, s64, v4")
        a("  global_store_dword v4, v3, s[62:63]")
    a("L_end:")
    a("  s_endpgm")
    a('.section .rodata,"a"')
    a(".p2align 6")
    a(f".amdhsa_kernel {NAME}_kernel")
    a("  .amdhsa_next_free_vgpr 64")
    a(f"  .amdhsa_next_free_sgpr {72 if diag else 40}")
    a("  .amdhsa_accum_offset 64")
    a("  .amdhsa_group_segment_fixed_size 0")
    a("  .amdhsa_kernarg_size 48")
    a("  .amdhsa_user_sgpr_count 2")
    a("  .amdhsa_user_sgpr_kernarg_segment_ptr 1")
    a("  .amdhsa_system_sgpr_workgroup_id_x 1")
    a(".end_amdhsa_kernel")
    return "\n".join(L) + "\n"


if __name__ == "__main__":
    out = "var/"
    open(out + "a_plain.s", "w").write(gen())
    open(out + "a_noemu.s", "w").write(gen(emulate=False))
    open(out + "a_st_nt.s", "w").write(gen(st=" nt"))
    open(out + "a_st_sc1.s", "w").write(gen(st=" sc1"))
    open(out + "a_st_sc0sc1.s", "w").write(gen(st=" sc0 sc1"))
    open(out + "a_ldnt_stnt.s", "w").write(gen(ld=" nt", st=" nt"))
    open(out + "d_plain.s", "w").write(gen(diag=True))
    open(out + "d_st_nt.s", "w").write(gen(st=" nt", diag=True))
    open(out + "t_plain.s", "w").write(gen(diag=2))
    open(out + "t_st_nt.s", "w").write(gen(st=" nt", diag=2))
```

```python
import re
NAME = "standalone__groupnorm__sampling"


def spin_kernel(k_idx, K, nwaves):
    per = nwaves // 256
    L = []
    a = L.append
    a(".text")
    a(".globl gn_diag_kernel")
    a(".p2align 8")
    a(".type gn_diag_kernel,@function")
    a("gn_diag_kernel:")
    a("  s_cmp_ge_u32 s2, 1")
    a("  s_cbranch_scc1 D_end")
    a("  s_load_dwordx2 s[4:5], s[0:1], 40")
    a("  s_waitcnt lgkmcnt(0)")
    a("  s_load_dword s8, s[4:5], 0")
    a("  v_lshlrev_b32 v1, 5, v0")
    a("  v_mov_b32 v2, 0x7fffffff")
    a("  v_mov_b32 v3, 0x80000000")
    a("  v_mov_b32 v6, 0")
    a("  s_waitcnt lgkmcnt(0)")
    a("  ds_write_b64 v6, v[2:3]")
    a("  s_mov_b32 s9, 0")
    a("D_loop:")
    a("  global_load_dword v4, v1, s[4:5]")
    a(f"  global_load_dword v5, v1, s[4:5] offset:{4*k_idx}")
    a("  s_waitcnt vmcnt(0)")
    a("  v_subrev_u32 v4, s8, v4")
    a("  v_subrev_u32 v5, s8, v5")
    a("  v_min_i32 v2, v2, v4")
    a("  v_max_i32 v3, v3, v5")
    a("  v_add_u32 v1, 0x2000, v1")
    a("  s_add_u32 s9, s9, 1")
    a(f"  s_cmp_lt_u32 s9, {per}")
    a("  s_cbranch_scc1 D_loop")
    a("  s_waitcnt lgkmcnt(0)")
    a("  s_barrier")
    a("  ds_min_i32 v6, v2")
    a("  ds_max_i32 v6, v3 offset:4")
    a("  s_waitcnt lgkmcnt(0)")
    a("  s_barrier")
    a("  ds_read_b64 v[2:3], v6")
    a("  s_waitcnt lgkmcnt(0)")
    a("  v_sub_u32 v2, v3, v2")
    a("  s_nop 0")
    a("  v_readfirstlane_b32 s10, v2")
    a("  s_nop 3")
    a("  s_min_u32 s10, s10, 4000")
    a(f"  s_mul_i32 s10, s10, {K}")
    a("  s_memrealtime s[12:13]")
    a("  s_waitcnt lgkmcnt(0)")
    a("D_wait:")
    a("  s_memrealtime s[14:15]")
    a("  s_waitcnt lgkmcnt(0)")
    a("  s_sub_u32 s16, s14, s12")
    a("  s_cmp_lt_u32 s16, s10")
    a("  s_cbranch_scc1 D_wait")
    a("D_end:")
    a("  s_endpgm")
    a('.section .rodata,"a"')
    a(".p2align 6")
    a(".amdhsa_kernel gn_diag_kernel")
    a("  .amdhsa_next_free_vgpr 8")
    a("  .amdhsa_next_free_sgpr 24")
    a("  .amdhsa_accum_offset 8")
    a("  .amdhsa_group_segment_fixed_size 0")
    a("  .amdhsa_kernarg_size 48")
    a("  .amdhsa_user_sgpr_count 2")
    a("  .amdhsa_user_sgpr_kernarg_segment_ptr 1")
    a("  .amdhsa_system_sgpr_workgroup_id_x 1")
    a(".end_amdhsa_kernel")
    return "\n".join(L) + "\n"


def wrap(main_src, k_idx, K, nwaves=4096):
    m = re.search(r"; @launch (grid=\S+ block=\S+ lds=\d+)", main_src)
    new = (f"; @launch kernel={NAME}_kernel {m.group(1)}\n"
           f"; @launch kernel=gn_diag_kernel grid=(1,1,1) block=(256,1,1) lds=64")
    return main_src.replace(m.group(0), new) + spin_kernel(k_idx, K, nwaves)
```

```python
from gen1 import gen
from spin import wrap
src = gen(ld=" nt", st=" nt", diag=2)
for k, K in [(0, 0), (0, 10), (1, 10), (4, 10), (5, 10), (7, 10)]:
    open(f"s_k{k}_K{K}.s", "w").write(wrap(src, k, K))
```

```python
from gen1 import gen
src = gen(ld=" nt", st=" nt")
for X in [0, 600, 800, 1000, 1500, 2500]:
    s = src.replace("  s_load_dwordx2 s[12:13], s[0:1], 0\n", "  s_memrealtime s[44:45]\n  s_load_dwordx2 s[12:13], s[0:1], 0\n")
    tail = f"""  s_cmp_lg_u32 s2, 0
  s_cbranch_scc1 L_end
L_wait:
  s_memrealtime s[46:47]
  s_waitcnt lgkmcnt(0)
  s_sub_u32 s48, s46, s44
  s_cmp_lt_u32 s48, {X}
  s_cbranch_scc1 L_wait
L_end:
"""
    s = s.replace("L_end:\n", tail).replace("next_free_sgpr 40", "next_free_sgpr 56")
    open(f"x_{X}.s", "w").write(s)
```

```python
import sys

NAME = "standalone__groupnorm__sampling"

HEADER = """; Kernarg layout for this problem (48 bytes, ptrs only, base s[0:1]):
"""


def gen(ld="", st="", emulate=True, diag=False, lds=64, gmap=None):
    lds_l = ld if isinstance(ld, (list, tuple)) else [ld] * 4
    sts_l = st if isinstance(st, (list, tuple)) else [st] * 4
    L = []
    a = L.append
    a(HEADER.rstrip())
    a(f"; @launch grid=(1024,1,1) block=(256,1,1) lds={lds}")
    a('.amdgcn_target "amdgcn-amd-amdhsa--gfx950"')
    a(".text")
    a(f".globl {NAME}_kernel")
    a(".p2align 8")
    a(f".type {NAME}_kernel,@function")
    a(f"{NAME}_kernel:")
    def T(i):
        if diag:
            a(f"  s_memrealtime s[{44+2*i}:{45+2*i}]")
    a("  s_cmp_ge_u32 s2, 0x400")
    a("  s_cbranch_scc1 L_end")
    T(0)
    a("  s_load_dwordx2 s[12:13], s[0:1], 0")
    a("  s_load_dwordx4 s[4:7], s[0:1], 8")
    a("  s_load_dwordx2 s[16:17], s[0:1], 24")
    a("  v_readfirstlane_b32 s3, v0")
    a("  v_and_b32 v1, 63, v0")
    a("  v_lshlrev_b32 v1, 4, v1")
    a("  s_mov_b32 s14, 0x1000000")
    a("  s_mov_b32 s15, 0x20000")
    a("  s_mov_b32 s18, 0x1000000")
    a("  s_mov_b32 s19, 0x20000")
    gid = "s2"
    if gmap == "xcd":
        a("  s_and_b32 s40, s2, 7")
        a("  s_lshl_b32 s40, s40, 7")
        a("  s_lshr_b32 s41, s2, 3")
        a("  s_add_u32 s40, s40, s41")
        gid = "s40"
    elif gmap == "rev":
        a("  s_sub_u32 s40, 0x3ff, s2")
        gid = "s40"
    elif gmap == "x16":
        a("  s_and_b32 s40, s2, 7")
        a("  s_lshl_b32 s40, s40, 4")
        a("  s_bfe_u32 s41, s2, 0x40003")
        a("  s_add_u32 s40, s40, s41")
        a("  s_and_b32 s41, s2, 0x380")
        a("  s_add_u32 s40, s40, s41")
        gid = "s40"
    elif gmap == "x2":
        a("  s_and_b32 s40, s2, 7")
        a("  s_lshl_b32 s40, s40, 1")
        a("  s_bfe_u32 s41, s2, 0x10003")
        a("  s_add_u32 s40, s40, s41")
        a("  s_and_b32 s41, s2, 0x3f0")
        a("  s_add_u32 s40, s40, s41")
        gid = "s40"
    a(f"  s_lshl_b32 s20, {gid}, 14")
    a("  s_lshl_b32 s21, s3, 6")
    a("  s_add_u32 s20, s20, s21")
    a(f"  s_and_b32 s22, {gid}, 31")
    a("  s_lshl_b32 s22, s22, 5")
    a("  s_lshr_b32 s23, s3, 3")
    a("  s_add_u32 s22, s22, s23")
    a("  s_waitcnt lgkmcnt(0)")
    T(1)
    raw = [4, 8, 12, 16]
    for j in range(4):
        off = f" offset:{j*1024}" if j else ""
        a(f"  buffer_load_dwordx4 v[{raw[j]}:{raw[j]+3}], v1, s[12:15], s20 offen{off}{lds_l[j]}")
    a("  s_load_dwordx2 s[24:25], s[4:5], s22")
    a("  s_load_dwordx2 s[26:27], s[6:7], s22")
    a("  s_mov_b32 s28, 0x3f803f80")
    a("  v_mov_b32 v2, 0")
    a("  v_mov_b32 v3, 0")
    a("  v_mov_b32 v20, 0")
    a("  v_mov_b32 v21, 0")
    a("  v_mov_b32 v22, s23")
    a("  v_mov_b32 v23, 0")
    a("  s_mov_b32 s30, 0")
    a("  s_mov_b32 s31, 0x80000000")
    a("  s_waitcnt lgkmcnt(0)")
    T(2)
    a("  s_lshl_b32 s32, s24, 16")
    a("  s_and_b32 s33, s24, 0xffff0000")
    a("  s_lshl_b32 s34, s25, 16")
    a("  s_and_b32 s35, s25, 0xffff0000")
    a("  s_lshl_b32 s36, s26, 16")
    a("  s_and_b32 s37, s26, 0xffff0000")
    a("  s_lshl_b32 s38, s27, 16")
    a("  s_and_b32 s39, s27, 0xffff0000")
    for j in range(4):
        a(f"  s_waitcnt vmcnt({3-j})")
        if j == 0:
            T(3)
        if j == 3:
            T(4)
        for k in range(4):
            r = raw[j] + k
            s1, s2 = (2, 3) if k % 2 == 0 else (20, 21)
            a(f"  v_dot2c_f32_bf16 v{s1}, s28, v{r}")
            a(f"  v_dot2c_f32_bf16 v{s2}, v{r}, v{r}")
    fill = []
    for j in range(4):
        for k in range(4):
            r = raw[j] + k
            d = 24 + (j * 4 + k) * 2
            fill.append(f"  v_lshlrev_b32 v{d}, 16, v{r}")
            fill.append(f"  v_and_b32 v{d+1}, 0xffff0000, v{r}")
    fi = [0]

    def F(n):
        for _ in range(n):
            if fi[0] < len(fill):
                a(fill[fi[0]])
                fi[0] += 1
            else:
                a("  s_nop 0")

    F(3)
    a("  v_add_f32 v2, v2, v20")
    a("  v_add_f32 v3, v3, v21")
    a("  v_readfirstlane_b32 s29, v2")
    a("  v_mul_f32 v20, 0x3d000000, v2")
    a("  v_fma_f32 v3, -v20, v2, v3")
    a("  v_subrev_f32 v2, s29, v2")
    a("  v_mul_f32 v20, 0x3d000000, v2")
    a("  v_fmac_f32 v3, v20, v2")
    F(2)
    a("  v_permlane32_swap_b32 v2, v3")
    a("  v_add_f32 v2, v2, v3")
    for ctl in ["quad_perm:[1,0,3,2] row_mask:0xf bank_mask:0xf",
                "quad_perm:[2,3,0,1] row_mask:0xf bank_mask:0xf",
                "row_half_mirror row_mask:0xf bank_mask:0xf",
                "row_mirror row_mask:0xf bank_mask:0xf",
                "row_bcast:15 row_mask:0xa bank_mask:0xf"]:
        F(2)
        a(f"  v_add_f32_dpp v2, v2, v2 {ctl}")
    F(2)
    a("  v_mov_b32_dpp v20, v2 row_bcast:31 row_mask:0xc bank_mask:0xf")
    a("  v_mov_b32 v21, 0x42800000")
    a("  v_mul_f32 v3, 0x3a000000, v20")
    a("  v_fma_f32 v3, -v3, v20, v2")
    a("  v_fma_f32 v2, s29, v21, v20")
    a("  s_mov_b64 exec, s[30:31]")
    a("  ds_write_b64 v22, v[2:3]")
    a("  s_mov_b64 exec, -1")
    a("  s_waitcnt lgkmcnt(0)")
    a("  s_barrier")
    T(5)
    a("  ds_read_b128 v[56:59], v23")
    a("  ds_read_b128 v[60:63], v23 offset:16")
    F(32 - fi[0])
    a("  s_waitcnt lgkmcnt(0)")
    a("  v_pk_add_f32 v[2:3], v[56:57], v[58:59]")
    a("  v_pk_add_f32 v[20:21], v[60:61], v[62:63]")
    a("  v_pk_add_f32 v[2:3], v[2:3], v[20:21]")
    a("  v_mul_f32 v20, 0.25, v2") if False else a("  v_mul_f32 v20, 0x3e800000, v2")
    a("  v_sub_f32 v56, v56, v20")
    a("  v_sub_f32 v58, v58, v20")
    a("  v_sub_f32 v60, v60, v20")
    a("  v_sub_f32 v62, v62, v20")
    a("  v_mul_f32 v21, v56, v56")
    a("  v_mul_f32 v22, v60, v60")
    a("  v_fmac_f32 v21, v58, v58")
    a("  v_fmac_f32 v22, v62, v62")
    a("  v_mul_f32 v2, 0x39000000, v2")
    a("  v_add_f32 v21, v21, v22")
    a("  v_fmac_f32 v3, 0x3a000000, v21")
    a("  v_mul_f32 v3, 0x39000000, v3")
    if emulate:
        a("  v_cvt_pk_bf16_f32 v20, 0, v2")
        a("  v_sub_f32 v21, v2, v20")
        a("  v_fmac_f32 v3, v21, v21")
        a("  v_cvt_pk_bf16_f32 v3, 0, v3")
        a("  v_add_f32 v3, 0x3727c5ac, v3")
        a("  v_cvt_pk_bf16_f32 v3, 0, v3")
        a("  v_sqrt_f32 v3, v3")
        a("  s_nop 0")
        a("  v_cvt_pk_bf16_f32 v3, 0, v3")
        a("  v_rcp_f32 v3, v3")
        a("  s_nop 0")
    else:
        a("  v_mov_b32 v20, v2")
        a("  v_add_f32 v3, 0x3727c5ac, v3")
        a("  v_rsq_f32 v3, v3")
        a("  s_nop 0")
    for j in range(4):
        a(f"  v_mul_f32 v{56+2*j}, s{32+j}, v3")
    for j in range(4):
        a(f"  v_fma_f32 v{57+2*j}, -v20, v{56+2*j}, s{36+j}")
    for j in range(4):
        ab = 56 + 2 * j
        for k in range(4):
            d = 24 + (j * 4 + k) * 2
            a(f"  v_pk_fma_f32 v[{d}:{d+1}], v[{d}:{d+1}], v[{ab}:{ab+1}], v[{ab}:{ab+1}] op_sel:[0,0,1] op_sel_hi:[1,0,1]")
        for k in range(4):
            d = 24 + (j * 4 + k) * 2
            a(f"  v_cvt_pk_bf16_f32 v{raw[j]+k}, v{d}, v{d+1}")
        off = f" offset:{j*1024}" if j else ""
        a(f"  buffer_store_dwordx4 v[{raw[j]}:{raw[j]+3}], v1, s[16:19], s20 offen{off}{sts_l[j]}")
    if diag:
        T(6)
        a("  s_waitcnt vmcnt(0)")
        T(7)
        a("  s_load_dwordx4 s[60:63], s[0:1], 32")
        a("  s_waitcnt lgkmcnt(0)")
        a("  s_not_b32 s64, s44")
        a("  v_writelane_b32 v2, s64, 0")
        for lane, t in [(1, 0), (2, 1), (3, 3), (4, 4), (5, 5), (6, 6), (7, 7)]:
            a(f"  v_writelane_b32 v2, s{44+2*t}, {lane}")
        for i in range(7):
            a(f"  s_sub_u32 s64, s{46+2*i}, s{44+2*i}")
            a(f"  v_writelane_b32 v2, s64, {8+i}")
        a("  s_not_b32 s64, s52")
        a("  v_writelane_b32 v2, s64, 15")
        for i in range(8):
            a(f"  v_writelane_b32 v3, s{44+2*i}, {i}")
        a("  v_and_b32 v4, 63, v0")
        a("  v_lshlrev_b32 v4, 2, v4")
        if diag == 1:
            a("  s_mov_b64 exec, 0x80ff")
            a("  global_atomic_umax v4, v2, s[60:61]")
            a("  s_mov_b64 exec, 0x7f00")
            a("  global_atomic_add v4, v2, s[60:61]")
        a("  s_mov_b64 exec, 0xff")
        a("  s_lshl_b32 s64, s2, 7")
        a("  s_lshr_b32 s65, s3, 1")
        a("  s_add_u32 s64, s64, s65")
        a("  v_add_u32 v4, s64, v4")
        a("  global_store_dword v4, v3, s[62:63]")
    a("L_end:")
    a("  s_endpgm")
    a('.section .rodata,"a"')
    a(".p2align 6")
    a(f".amdhsa_kernel {NAME}_kernel")
    a("  .amdhsa_next_free_vgpr 64")
    a(f"  .amdhsa_next_free_sgpr {72 if diag else 42}")
    a("  .amdhsa_accum_offset 64")
    a("  .amdhsa_group_segment_fixed_size 0")
    a("  .amdhsa_kernarg_size 48")
    a("  .amdhsa_user_sgpr_count 2")
    a("  .amdhsa_user_sgpr_kernarg_segment_ptr 1")
    a("  .amdhsa_system_sgpr_workgroup_id_x 1")
    a(".end_amdhsa_kernel")
    return "\n".join(L) + "\n"


if __name__ == "__main__":
    out = "var/"
    open(out + "a_plain.s", "w").write(gen())
    open(out + "a_noemu.s", "w").write(gen(emulate=False))
    open(out + "a_st_nt.s", "w").write(gen(st=" nt"))
    open(out + "a_st_sc1.s", "w").write(gen(st=" sc1"))
    open(out + "a_st_sc0sc1.s", "w").write(gen(st=" sc0 sc1"))
    open(out + "a_ldnt_stnt.s", "w").write(gen(ld=" nt", st=" nt"))
    open(out + "d_plain.s", "w").write(gen(diag=True))
    open(out + "d_st_nt.s", "w").write(gen(st=" nt", diag=True))
    open(out + "t_plain.s", "w").write(gen(diag=2))
    open(out + "t_st_nt.s", "w").write(gen(st=" nt", diag=2))
```

```python
import re
NAME = "standalone__groupnorm__sampling"


def spin_kernel(k_idx, K, nwaves):
    per = max(1, nwaves // 256)
    L = []
    a = L.append
    a(".text")
    a(".globl gn_diag_kernel")
    a(".p2align 8")
    a(".type gn_diag_kernel,@function")
    a("gn_diag_kernel:")
    a("  s_cmp_ge_u32 s2, 1")
    a("  s_cbranch_scc1 D_end")
    a("  s_memrealtime s[18:19]")
    a("  s_load_dwordx2 s[4:5], s[0:1], 40")
    a("  s_waitcnt lgkmcnt(0)")
    a("  s_load_dword s8, s[4:5], 0")
    if nwaves < 256:
        a(f"  v_min_u32 v0, {nwaves-1}, v0")
    a("  v_lshlrev_b32 v1, 5, v0")
    a("  v_mov_b32 v2, 0x7fffffff")
    a("  v_mov_b32 v3, 0x80000000")
    a("  v_mov_b32 v6, 0")
    a("  s_waitcnt lgkmcnt(0)")
    a("  ds_write_b64 v6, v[2:3]")
    for i in range(per):
        a(f"  global_load_dword v{8+2*i}, v1, s[4:5]")
        if k_idx >= 0:
            a(f"  global_load_dword v{9+2*i}, v1, s[4:5] offset:{4*k_idx}")
        a("  v_add_u32 v1, 0x2000, v1")
    a("  s_waitcnt vmcnt(0)")
    for i in range(per):
        if k_idx < 0:
            a(f"  v_mov_b32 v{9+2*i}, s18")
        a(f"  v_subrev_u32 v4, s8, v{8+2*i}")
        a(f"  v_subrev_u32 v5, s8, v{9+2*i}")
        a("  v_min_i32 v2, v2, v4")
        a("  v_max_i32 v3, v3, v5")
    a("  s_waitcnt lgkmcnt(0)")
    a("  s_barrier")
    a("  ds_min_i32 v6, v2")
    a("  ds_max_i32 v6, v3 offset:4")
    a("  s_waitcnt lgkmcnt(0)")
    a("  s_barrier")
    a("  ds_read_b64 v[2:3], v6")
    a("  s_waitcnt lgkmcnt(0)")
    a("  v_sub_u32 v2, v3, v2")
    a("  s_nop 0")
    a("  v_readfirstlane_b32 s10, v2")
    a("  s_nop 3")
    a("  s_load_dwordx2 s[20:21], s[0:1], 32")
    a("  s_waitcnt lgkmcnt(0)")
    a("  global_store_dword v6, v2, s[20:21]")
    a("  s_min_u32 s10, s10, 4000")
    a(f"  s_mul_i32 s10, s10, {K}")
    a("  s_memrealtime s[12:13]")
    a("  s_waitcnt lgkmcnt(0)")
    a("D_wait:")
    a("  s_memrealtime s[14:15]")
    a("  s_waitcnt lgkmcnt(0)")
    a("  s_sub_u32 s16, s14, s12")
    a("  s_cmp_lt_u32 s16, s10")
    a("  s_cbranch_scc1 D_wait")
    a("D_end:")
    a("  s_endpgm")
    a('.section .rodata,"a"')
    a(".p2align 6")
    a(".amdhsa_kernel gn_diag_kernel")
    a("  .amdhsa_next_free_vgpr 144")
    a("  .amdhsa_next_free_sgpr 24")
    a("  .amdhsa_accum_offset 144")
    a("  .amdhsa_group_segment_fixed_size 0")
    a("  .amdhsa_kernarg_size 48")
    a("  .amdhsa_user_sgpr_count 2")
    a("  .amdhsa_user_sgpr_kernarg_segment_ptr 1")
    a("  .amdhsa_system_sgpr_workgroup_id_x 1")
    a(".end_amdhsa_kernel")
    return "\n".join(L) + "\n"


def wrap(main_src, k_idx, K, nwaves=4096):
    m = re.search(r"; @launch (grid=\S+ block=\S+ lds=\d+)", main_src)
    new = (f"; @launch kernel={NAME}_kernel {m.group(1)}\n"
           f"; @launch kernel=gn_diag_kernel grid=(1,1,1) block=(256,1,1) lds=64")
    return main_src.replace(m.group(0), new) + spin_kernel(k_idx, K, nwaves)
```

```python
import struct
from gen1 import HEADER, NAME


def f32(x):
    return "0x%08x" % struct.unpack("<I", struct.pack("<f", x))[0]


def gen(C=8, W=4, ld=" nt", st=" nt", diag=0, barrier=True, early_unpack=True, wmap="contig"):
    WPG = 16 // C
    GPW = W * C // 16
    assert GPW >= 1
    grid = 1024 // GPW
    n_l = 8 * C
    n_w = 64 * n_l
    L = []
    a = L.append
    a(HEADER.rstrip())
    a(f"; @launch grid=({grid},1,1) block=({W*64},1,1) lds={max(64, W*8)}")
    a('.amdgcn_target "amdgcn-amd-amdhsa--gfx950"')
    a(".text")
    a(f".globl {NAME}_kernel")
    a(".p2align 8")
    a(f".type {NAME}_kernel,@function")
    a(f"{NAME}_kernel:")
    TS = 84

    def T(i):
        if diag == 2 or (diag in (3, 4) and i == 0):
            a(f"  s_memrealtime s[{TS+2*i}:{TS+1+2*i}]")
    RG = 28
    RB = RG + max(C // 2, 4) if C < 16 else RG + 8
    FG = RB + max(C // 2, 4) if C < 16 else RB + 8
    FB = FG + C
    assert FB + C <= TS
    a(f"  s_cmp_ge_u32 s2, {grid}")
    a("  s_cbranch_scc1 L_end")
    T(0)
    a("  s_load_dwordx2 s[8:9], s[0:1], 0")
    a("  s_load_dwordx4 s[4:7], s[0:1], 8")
    a("  s_load_dwordx2 s[12:13], s[0:1], 24")
    a("  v_readfirstlane_b32 s3, v0")
    a("  v_and_b32 v1, 63, v0")
    a("  v_lshlrev_b32 v1, 4, v1")
    a("  s_mov_b32 s10, 0x1000000")
    a("  s_mov_b32 s11, 0x20000")
    a("  s_mov_b32 s14, 0x1000000")
    a("  s_mov_b32 s15, 0x20000")
    sh = (W * C * 1024).bit_length() - 1
    a(f"  s_lshl_b32 s16, s2, {sh}")
    shw = (C * 16).bit_length() - 1
    a(f"  s_lshl_b32 s17, s3, {shw}")
    a("  s_add_u32 s16, s16, s17")
    for q in range(1, C // 4):
        a(f"  s_add_u32 s{16+q}, s16, {q*4096}")
    a("  s_bfe_u32 s20, s16, 0x9000a")
    a("  s_lshl_b32 s20, s20, 1")
    a("  s_lshr_b32 s21, s3, 3")
    if diag == 4:
        a(f"  s_load_dwordx2 s[{TS+2}:{TS+3}], s[0:1], 40")
        a(f"  s_lshl_b32 s{TS+4}, s2, 5")
        a(f"  v_mov_b32 v2, s{TS+4}")
    if diag == 3:
        a(f"  s_load_dwordx2 s[{TS+2}:{TS+3}], s[0:1], 40")
        a(f"  s_mul_i32 s{TS+4}, s2, {W*32}")
        a(f"  s_lshr_b32 s{TS+5}, s3, 1")
        a(f"  s_add_u32 s{TS+4}, s{TS+4}, s{TS+5}")
        a(f"  v_mov_b32 v2, s{TS+4}")
    a("  s_waitcnt lgkmcnt(0)")
    T(1)
    if diag == 4:
        a(f"  s_lshl_b32 s{TS+5}, s3, 4")
        a(f"  s_add_u32 s{TS+5}, s{TS+5}, s2")
        a(f"  s_cmp_ge_u32 s{TS+5}, 16")
        a("  s_cbranch_scc1 L_nostamp")
        a(f"  v_mov_b32 v3, s{TS}")
        a("  s_mov_b64 exec, 1")
        a(f"  global_store_dword v2, v3, s[{TS+2}:{TS+3}]")
        a("  s_mov_b64 exec, -1")
        a("L_nostamp:")
    if diag == 3:
        a(f"  v_mov_b32 v3, s{TS}")
        a("  s_mov_b64 exec, 1")
        a(f"  global_store_dword v2, v3, s[{TS+2}:{TS+3}]")
        a("  s_mov_b64 exec, -1")
    R0 = 8
    F0 = R0 + 4 * C
    AB = F0 + 8 * C
    nv = AB + 8
    raw = [R0 + 4 * j for j in range(C)]

    def so(j):
        return f"s{16 + j // 4}"

    def off(j):
        return f" offset:{(j % 4) * 1024}" if j % 4 else ""
    for j in range(C):
        a(f"  buffer_load_dwordx4 v[{raw[j]}:{raw[j]+3}], v1, s[8:11], {so(j)} offen{off(j)}{ld}")
    gw = {4: "x2", 8: "x4", 16: "x8"}[C]
    a(f"  s_load_dword{gw} s[{RG}:{RG+C//2-1}], s[4:5], s20")
    a(f"  s_load_dword{gw} s[{RB}:{RB+C//2-1}], s[6:7], s20")
    a("  s_mov_b32 s22, 0x3f803f80")
    a("  v_mov_b32 v2, 0")
    a("  v_mov_b32 v3, 0")
    a("  v_mov_b32 v4, 0")
    a("  v_mov_b32 v5, 0")
    if WPG > 1:
        a("  v_mov_b32 v6, s21")
        a(f"  s_and_b32 s26, s21, {(~(WPG*8-1)) & 0xff}")
        a("  v_mov_b32 v7, s26")
        a("  s_mov_b32 s24, 0")
        a("  s_mov_b32 s25, 0x80000000")
    a("  s_waitcnt lgkmcnt(0)")
    T(2)
    for k in range(C // 2):
        a(f"  s_lshl_b32 s{FG+2*k}, s{RG+k}, 16")
        a(f"  s_and_b32 s{FG+2*k+1}, s{RG+k}, 0xffff0000")
        a(f"  s_lshl_b32 s{FB+2*k}, s{RB+k}, 16")
        a(f"  s_and_b32 s{FB+2*k+1}, s{RB+k}, 0xffff0000")
    fill = []
    for j in range(C):
        for k in range(4):
            r = raw[j] + k
            d = F0 + (j * 4 + k) * 2
            fill.append(f"  v_lshlrev_b32 v{d}, 16, v{r}")
            fill.append(f"  v_and_b32 v{d+1}, 0xffff0000, v{r}")
    fi = [0]

    def F(n, pad=True):
        for _ in range(n):
            if fi[0] < len(fill):
                a(fill[fi[0]])
                fi[0] += 1
            elif pad:
                a("  s_nop 0")
    keep = 32
    for j in range(C):
        a(f"  s_waitcnt vmcnt({C-1-j})")
        if j == 0:
            T(3)
        if j == C - 1:
            T(4)
        for k in range(4):
            r = raw[j] + k
            s1, s2 = (2, 3) if k % 2 == 0 else (4, 5)
            a(f"  v_dot2c_f32_bf16 v{s1}, s22, v{r}")
            a(f"  v_dot2c_f32_bf16 v{s2}, v{r}, v{r}")
        if early_unpack and j < C - 1 and fi[0] + 8 <= len(fill) - keep and fi[0] + 8 <= (j + 1) * 8:
            F(8)
    F(3)
    a("  v_add_f32 v2, v2, v4")
    a("  v_add_f32 v3, v3, v5")
    a("  v_readfirstlane_b32 s23, v2")
    a(f"  v_mul_f32 v4, {f32(1.0/n_l)}, v2")
    a("  v_fma_f32 v3, -v4, v2, v3")
    a("  v_subrev_f32 v2, s23, v2")
    a(f"  v_mul_f32 v4, {f32(1.0/n_l)}, v2")
    a("  v_fmac_f32 v3, v4, v2")
    F(2)
    a("  v_permlane32_swap_b32 v2, v3")
    a("  v_add_f32 v2, v2, v3")
    for ctl in ["quad_perm:[1,0,3,2] row_mask:0xf bank_mask:0xf",
                "quad_perm:[2,3,0,1] row_mask:0xf bank_mask:0xf",
                "row_half_mirror row_mask:0xf bank_mask:0xf",
                "row_mirror row_mask:0xf bank_mask:0xf",
                "row_bcast:15 row_mask:0xa bank_mask:0xf"]:
        F(2)
        a(f"  v_add_f32_dpp v2, v2, v2 {ctl}")
    if WPG > 1:
        F(2)
        a("  v_mov_b32_dpp v4, v2 row_bcast:31 row_mask:0xc bank_mask:0xf")
        a("  v_mov_b32 v5, 0x42800000")
        a(f"  v_mul_f32 v3, {f32(1.0/n_w)}, v4")
        a("  v_fma_f32 v3, -v3, v4, v2")
        a("  v_fma_f32 v2, s23, v5, v4")
        a("  s_mov_b64 exec, s[24:25]")
        a("  ds_write_b64 v6, v[2:3]")
        a("  s_mov_b64 exec, -1")
        a("  s_waitcnt lgkmcnt(0)")
        a("  s_barrier")
        T(5)
        q = AB
        a(f"  ds_read_b128 v[{q}:{q+3}], v7")
        if WPG == 4:
            a(f"  ds_read_b128 v[{q+4}:{q+7}], v7 offset:16")
        F(len(fill) - fi[0])
        a("  s_waitcnt lgkmcnt(0)")
        if WPG == 4:
            a(f"  v_pk_add_f32 v[2:3], v[{q}:{q+1}], v[{q+2}:{q+3}]")
            a(f"  v_pk_add_f32 v[4:5], v[{q+4}:{q+5}], v[{q+6}:{q+7}]")
            a("  v_pk_add_f32 v[2:3], v[2:3], v[4:5]")
            a("  v_mul_f32 v4, 0x3e800000, v2")
            for i in range(4):
                a(f"  v_sub_f32 v{q+2*i}, v{q+2*i}, v4")
            a(f"  v_mul_f32 v5, v{q}, v{q}")
            a(f"  v_mul_f32 v6, v{q+4}, v{q+4}")
            a(f"  v_fmac_f32 v5, v{q+2}, v{q+2}")
            a(f"  v_fmac_f32 v6, v{q+6}, v{q+6}")
            a("  v_mul_f32 v2, 0x39000000, v2")
            a("  v_add_f32 v5, v5, v6")
            a(f"  v_fmac_f32 v3, {f32(1.0/n_w)}, v5")
            a("  v_mul_f32 v3, 0x39000000, v3")
        else:
            a(f"  v_sub_f32 v4, v{q}, v{q+2}")
            a(f"  v_pk_add_f32 v[2:3], v[{q}:{q+1}], v[{q+2}:{q+3}]")
            a(f"  v_mul_f32 v5, {f32(0.5/n_w)}, v4")
            a("  v_mul_f32 v2, 0x39000000, v2")
            a("  v_fmac_f32 v3, v5, v4")
            a("  v_mul_f32 v3, 0x39000000, v3")
    else:
        F(1)
        a("  v_readlane_b32 s26, v2, 31")
        a("  v_readlane_b32 s27, v2, 63")
        a("  v_mov_b32 v5, 0x42800000")
        F(1)
        a("  v_mov_b32 v4, s26")
        a(f"  v_mul_f32 v3, {f32(1.0/n_w)}, v4")
        a("  v_fma_f32 v2, s23, v5, v4")
        a("  v_fma_f32 v3, -v3, v4, s27")
        a("  v_mul_f32 v2, 0x39000000, v2")
        a("  v_mul_f32 v3, 0x39000000, v3")
        if barrier:
            a("  s_barrier")
        T(5)
    a("  v_cvt_pk_bf16_f32 v4, 0, v2")
    a("  v_sub_f32 v5, v2, v4")
    a("  v_fmac_f32 v3, v5, v5")
    a("  v_cvt_pk_bf16_f32 v3, 0, v3")
    a("  v_add_f32 v3, 0x3727c5ac, v3")
    a("  v_cvt_pk_bf16_f32 v3, 0, v3")
    a("  v_sqrt_f32 v3, v3")
    F(1)
    a("  v_cvt_pk_bf16_f32 v3, 0, v3")
    a("  v_rcp_f32 v3, v3")
    F(1)
    F(len(fill) - fi[0])
    for j in range(C):
        ab = AB + 2 * (j % 4)
        a(f"  v_mul_f32 v{ab}, s{FG+j}, v3")
        a(f"  v_fma_f32 v{ab+1}, -v4, v{ab}, s{FB+j}")
        for k in range(4):
            d = F0 + (j * 4 + k) * 2
            a(f"  v_pk_fma_f32 v[{d}:{d+1}], v[{d}:{d+1}], v[{ab}:{ab+1}], v[{ab}:{ab+1}] op_sel:[0,0,1] op_sel_hi:[1,0,1]")
        for k in range(4):
            d = F0 + (j * 4 + k) * 2
            a(f"  v_cvt_pk_bf16_f32 v{raw[j]+k}, v{d}, v{d+1}")
        a(f"  buffer_store_dwordx4 v[{raw[j]}:{raw[j]+3}], v1, s[12:15], {so(j)} offen{off(j)}{st}")
    if diag == 2:
        T(6)
        a("  s_waitcnt vmcnt(0)")
        T(7)
        a("  s_load_dwordx4 s[28:31], s[0:1], 32")
        a(f"  s_getreg_b32 s{TS+4}, hwreg(HW_REG_HW_ID)")
        a("  s_getreg_b32 s32, hwreg(HW_REG_XCC_ID)")
        a(f"  s_and_b32 s{TS+4}, s{TS+4}, 0xffff")
        a("  s_lshl_b32 s32, s32, 16")
        a(f"  s_or_b32 s{TS+4}, s{TS+4}, s32")
        a("  s_waitcnt lgkmcnt(0)")
        for i in range(8):
            a(f"  v_writelane_b32 v3, s{TS+2*i}, {i}")
        a("  v_and_b32 v4, 63, v0")
        a("  v_lshlrev_b32 v4, 2, v4")
        a("  s_mov_b64 exec, 0xff")
        a(f"  s_mul_i32 s32, s2, {W*32}")
        a("  s_lshr_b32 s33, s3, 1")
        a("  s_add_u32 s32, s32, s33")
        a("  v_add_u32 v4, s32, v4")
        a("  global_store_dword v4, v3, s[30:31]")
    a("L_end:")
    a("  s_endpgm")
    a('.section .rodata,"a"')
    a(".p2align 6")
    a(f".amdhsa_kernel {NAME}_kernel")
    nv = (nv + 7) // 8 * 8
    a(f"  .amdhsa_next_free_vgpr {nv}")
    a(f"  .amdhsa_next_free_sgpr {100 if diag else FB + C}")
    a(f"  .amdhsa_accum_offset {nv}")
    a("  .amdhsa_group_segment_fixed_size 0")
    a("  .amdhsa_kernarg_size 48")
    a("  .amdhsa_user_sgpr_count 2")
    a("  .amdhsa_user_sgpr_kernarg_segment_ptr 1")
    a("  .amdhsa_system_sgpr_workgroup_id_x 1")
    a(".end_amdhsa_kernel")
    return "\n".join(L) + "\n", grid * W


if __name__ == "__main__":
    from spin import wrap
    V = {
        "c4w4": dict(C=4, W=4),
        "c4w8": dict(C=4, W=8),
        "c8w2": dict(C=8, W=2),
        "c8w4": dict(C=8, W=4),
        "c8w8": dict(C=8, W=8),
        "c16w1": dict(C=16, W=1, barrier=False),
        "c16w2": dict(C=16, W=2),
        "c16w2n": dict(C=16, W=2, barrier=False),
        "c16w4": dict(C=16, W=4),
    }
    names = []
    for k, v in V.items():
        src, nw = gen(diag=4, **v)
        open(f"b_{k}.s", "w").write(wrap(src, -1, 10, 16))
        open(f"b0_{k}.s", "w").write(wrap(src, -1, 0, 16))
        src, nw = gen(diag=2, **v)
        open(f"bm_{k}.s", "w").write(wrap(src, -1, 0, nw))
        open(f"bp_{k}.s", "w").write(gen(**v)[0])
        names.append(f"var/bm_{k}.s")
    print(" ".join(names))
```

```python
from gen1 import HEADER, NAME
from spin import wrap


def gen(mode, ld=" nt", st=" nt", lds=64, nload=4, block=256, ngrid=None, xmask=None, phase=None, wphase=None):
    waves = block // 64
    total_waves = 16384 // nload
    grid = total_waves // waves
    if ngrid:
        grid = ngrid
        total_waves = grid * waves
    L = []
    a = L.append
    a(HEADER.rstrip())
    a(f"; @launch grid=({grid},1,1) block=({block},1,1) lds={lds}")
    a('.amdgcn_target "amdgcn-amd-amdhsa--gfx950"')
    a(".text")
    a(f".globl {NAME}_kernel")
    a(".p2align 8")
    a(f".type {NAME}_kernel,@function")
    a(f"{NAME}_kernel:")
    def T(i):
        a(f"  s_memrealtime s[{44+2*i}:{45+2*i}]")
    a(f"  s_cmp_ge_u32 s2, {grid}")
    a("  s_cbranch_scc1 L_end")
    if xmask is not None:
        a("  s_and_b32 s3, s2, 7")
        a(f"  s_bitcmp1_b32 {xmask}, s3") if False else None
        a(f"  s_mov_b32 s4, {xmask}")
        a("  s_bitcmp1_b32 s4, s3")
        a("  s_cbranch_scc0 L_skip")
    T(0)
    a("  s_load_dwordx2 s[12:13], s[0:1], 0")
    a("  s_load_dwordx2 s[16:17], s[0:1], 24")
    a("  v_readfirstlane_b32 s3, v0")
    a("  v_and_b32 v1, 63, v0")
    a("  v_lshlrev_b32 v1, 4, v1")
    a("  s_mov_b32 s14, 0x1000000")
    a("  s_mov_b32 s15, 0x20000")
    a("  s_mov_b32 s18, 0x1000000")
    a("  s_mov_b32 s19, 0x20000")
    a(f"  s_mul_i32 s20, s2, {waves * nload * 1024}")
    a(f"  s_mul_i32 s21, s3, {nload * 16}")
    a("  s_add_u32 s20, s20, s21")
    if phase is not None:
        a("  s_lshr_b32 s4, s2, 3")
        a("  s_lshl_b32 s4, s4, 2")
        a("  s_and_b32 s5, s2, 3")
        a("  s_add_u32 s4, s4, s5")
        a("  s_lshl_b32 s20, s4, 15")
        a("  s_lshr_b32 s5, s2, 2")
        a("  s_lshr_b32 s6, s20, 21")
        a("  s_xor_b32 s5, s5, s6")
        a(f"  s_xor_b32 s5, s5, {phase}")
        a("  s_and_b32 s5, s5, 1")
        a("  s_lshl_b32 s5, s5, 13")
        a("  s_add_u32 s20, s20, s5")
        a("  s_lshr_b32 s5, s3, 7")
        a("  s_lshl_b32 s5, s5, 14")
        a("  s_add_u32 s20, s20, s5")
        a("  s_lshr_b32 s5, s3, 6")
        a("  s_and_b32 s5, s5, 1")
        a("  s_lshl_b32 s5, s5, 12")
        a("  s_add_u32 s20, s20, s5")
    a("  s_mov_b32 s21, s20")
    if wphase:
        a("  s_xor_b32 s21, s20, 0x2000")
    for j in range(4, nload, 4):
        a(f"  s_add_u32 s{24 + j // 4}, s20, {j * 1024}")
    a("  s_waitcnt lgkmcnt(0)")
    T(1)
    def so(j):
        return "s20" if j < 4 else f"s{24 + j // 4}"
    def off(j):
        return f" offset:{(j % 4) * 1024}" if j % 4 else ""
    if mode != "write":
        for j in range(nload):
            a(f"  buffer_load_dwordx4 v[{4+4*j}:{7+4*j}], v1, s[12:15], {so(j)} offen{off(j)}{ld}")
    if mode == "read":
        a(f"  s_waitcnt vmcnt({nload-1})")
        T(3)
        a("  s_waitcnt vmcnt(0)")
        T(4); T(5); T(6); T(7)
    elif mode == "write":
        T(3); T(4); T(5)
        for j in range(nload):
            a(f"  buffer_store_dwordx4 v[{4+4*j}:{7+4*j}], v1, s[16:19], {so(j).replace('s20','s21')} offen{off(j)}{st}")
        T(6)
        a("  s_waitcnt vmcnt(0)")
        T(7)
    elif mode == "copy":
        for j in range(nload):
            a(f"  s_waitcnt vmcnt({nload-1})")
            if j == 0: T(3)
            if j == nload - 1: T(4); T(5)
            a(f"  buffer_store_dwordx4 v[{4+4*j}:{7+4*j}], v1, s[16:19], {so(j).replace('s20','s21')} offen{off(j)}{st}")
        T(6)
        a("  s_waitcnt vmcnt(0)")
        T(7)
    elif mode == "copyb":
        a(f"  s_waitcnt vmcnt({nload-1})")
        T(3)
        a("  s_waitcnt vmcnt(0)")
        T(4)
        a("  s_barrier")
        T(5)
        for j in range(nload):
            a(f"  buffer_store_dwordx4 v[{4+4*j}:{7+4*j}], v1, s[16:19], {so(j).replace('s20','s21')} offen{off(j)}{st}")
        T(6)
        a("  s_waitcnt vmcnt(0)")
        T(7)
    if xmask is not None:
        a("  s_branch L_trace")
        a("L_skip:")
        a("  v_readfirstlane_b32 s3, v0")
        for i in range(8):
            T(i)
        a("  s_waitcnt lgkmcnt(0)")
        a("L_trace:")
    a("  s_load_dwordx4 s[60:63], s[0:1], 32")
    a("  s_getreg_b32 s48, hwreg(HW_REG_HW_ID)")
    a("  s_getreg_b32 s64, hwreg(HW_REG_XCC_ID)")
    a("  s_and_b32 s48, s48, 0xffff")
    a("  s_lshl_b32 s64, s64, 16")
    a("  s_or_b32 s48, s48, s64")
    a("  s_waitcnt lgkmcnt(0)")
    for i in range(8):
        a(f"  v_writelane_b32 v3, s{44+2*i}, {i}")
    a("  v_and_b32 v2, 63, v0")
    a("  v_lshlrev_b32 v2, 2, v2")
    a("  s_mov_b64 exec, 0xff")
    a(f"  s_mul_i32 s64, s2, {waves*32}")
    a("  s_lshr_b32 s65, s3, 1")
    a("  s_add_u32 s64, s64, s65")
    a("  v_add_u32 v2, s64, v2")
    a("  global_store_dword v2, v3, s[62:63]")
    a("L_end:")
    a("  s_endpgm")
    a('.section .rodata,"a"')
    a(".p2align 6")
    a(f".amdhsa_kernel {NAME}_kernel")
    nv = max(64, 4 + 4 * nload)
    a(f"  .amdhsa_next_free_vgpr {nv}")
    a("  .amdhsa_next_free_sgpr 72")
    a(f"  .amdhsa_accum_offset {nv}")
    a("  .amdhsa_group_segment_fixed_size 0")
    a("  .amdhsa_kernarg_size 48")
    a("  .amdhsa_user_sgpr_count 2")
    a("  .amdhsa_user_sgpr_kernarg_segment_ptr 1")
    a("  .amdhsa_system_sgpr_workgroup_id_x 1")
    a(".end_amdhsa_kernel")
    return "\n".join(L) + "\n", total_waves


if __name__ == "__main__":
    for mode in ["read", "write", "copy", "copyb"]:
        src, nw = gen(mode)
        open(f"f_{mode}.s", "w").write(wrap(src, -1, 0, nw))
    for mode in ["copy", "copyb"]:
        src, nw = gen(mode, nload=1)
        open(f"f1_{mode}.s", "w").write(wrap(src, -1, 0, nw))
        src, nw = gen(mode, nload=2)
        open(f"f2_{mode}.s", "w").write(wrap(src, -1, 0, nw))
```

```python
import re
from floor import gen as fgen
from gen1 import gen, NAME, HEADER
from spin import spin_kernel

def build(fsrc, nw, K, k_idx=-1):
    m = re.search(r"; @launch (grid=\S+ block=\S+ lds=\d+)", fsrc)
    fl = m.group(1)
    body = fsrc[fsrc.index(".text"):].replace(NAME + "_kernel", "gn_floor_kernel").replace("L_end", "F_end").replace("L_skip", "F_skip").replace("L_trace", "F_trace")
    real = gen(ld=" nt", st=" nt")
    m2 = re.search(r"; @launch (grid=\S+ block=\S+ lds=\d+)", real)
    new = (f"; @launch kernel=gn_floor_kernel {fl}\n"
           f"; @launch kernel=gn_diag_kernel grid=(1,1,1) block=(256,1,1) lds=64\n"
           f"; @launch kernel={NAME}_kernel {m2.group(1)}")
    return real.replace(m2.group(0), new) + body + spin_kernel(k_idx, K, nw)

if __name__ == "__main__":
    for mode in ["read", "write", "copyb"]:
        for K in [0, 10]:
            src, nw = fgen(mode)
            open(f"o_{mode}_K{K}.s", "w").write(build(src, nw, K))
```

```python
from mk_off import build
from floor import gen as fgen
V = {
 "nb": dict(mode="copyb"),
 "n00": dict(mode="copyb", phase=0),
 "n01": dict(mode="copyb", phase=0, wphase=1),
 "n11": dict(mode="copyb", phase=1),
 "n10": dict(mode="copyb", phase=1, wphase=1),
}
names=[]
for k, v in V.items():
    src, nw = fgen(**v)
    open(f"o_{k}.s", "w").write(build(src, nw, 10)); names.append(f"var/o_{k}.s")
src, nw = fgen(mode="copyb")
open(f"o_nbK0.s", "w").write(build(src, nw, 0)); names.append(f"var/o_nbK0.s")
print(" ".join(names))
```

```python
from gen2 import gen
from spin import wrap
V = {
 "nt_nt": (" nt"," nt"),
 "nt_s1nt": (" nt"," sc1 nt"),
 "nt_s01nt": (" nt"," sc0 sc1 nt"),
 "nt_s0nt": (" nt"," sc0 nt"),
 "nt_s1": (" nt"," sc1"),
 "nt_s0": (" nt"," sc0"),
 "s1nt_nt": (" sc1 nt"," nt"),
 "s01nt_nt": (" sc0 sc1 nt"," nt"),
 "s0nt_nt": (" sc0 nt"," nt"),
 "s1_nt": (" sc1"," nt"),
 "s01_nt": (" sc0 sc1"," nt"),
}
for k,(l,s) in V.items():
    src,nw = gen(C=4,W=4,ld=l,st=s,diag=4)
    open(f"q_{k}.s","w").write(wrap(src,-1,10,16))
print(" ".join(V))
```

```python
from gen2 import gen
from spin import wrap
import re

def rebal(src, per, slow=0):
    n0 = 1024 - 7*per
    grid = 8*per
    src = src.replace("grid=(1024,1,1)", f"grid=({grid},1,1)")
    old = "  s_cmp_ge_u32 s2, 1024\n  s_cbranch_scc1 L_end\n"
    assert old in src
    new = (f"  s_lshr_b32 s40, s2, 3\n"
           f"  s_sub_u32 s41, s2, {slow}\n"
           f"  s_and_b32 s41, s41, 7\n"
           f"  s_mul_i32 s42, s40, 7\n"
           f"  s_add_u32 s42, s42, s41\n"
           f"  s_sub_u32 s42, s42, 1\n"
           f"  s_add_u32 s43, s40, {7*per}\n"
           f"  s_cmp_eq_u32 s41, 0\n"
           f"  s_cselect_b32 s42, s43, s42\n"
           f"  s_cmp_ge_u32 s2, {grid}\n"
           f"  s_cselect_b32 s42, 1024, s42\n"
           f"  s_cmp_ge_u32 s42, 1024\n"
           f"  s_cbranch_scc1 L_end\n")
    src = src.replace(old, new)
    src = src.replace("  s_lshl_b32 s16, s2, 14", "  s_lshl_b32 s16, s42, 14")
    return src

def touch(src):
    anchor = "  s_load_dwordx2 s[28:29], s[4:5], s20\n"
    assert anchor in src
    src = src.replace(anchor, "  buffer_load_dword v63, off, s[12:15], s16\n" + anchor)
    for k in (3,2,1,0):
        src = src.replace(f"  s_waitcnt vmcnt({k})\n", f"  s_waitcnt vmcnt(@{k+1})\n", 1)
    src = src.replace("vmcnt(@", "vmcnt(")
    return src

base, nw = gen(C=4, W=4, diag=4)
print(re.findall(r"next_free_vgpr \d+", base))
out = {}
out["base"] = base
out["r129"] = rebal(base, 129)
out["r130"] = rebal(base, 130)
out["r131"] = rebal(base, 131)
out["r130s4"] = rebal(base, 130, 4)
out["touch"] = touch(base).replace("next_free_vgpr 64","next_free_vgpr 72").replace("accum_offset 64","accum_offset 72").replace("v63, off","v64, off")
for k, s in out.items():
    open(f"rb_{k}.s", "w").write(wrap(s, -1, 10, 16))
```

```python
from gen1 import HEADER, NAME
from mk_off import build

def gen(seq, grid=1024, block=256, per_wave_kib=4, ld=" nt", st=" nt", contiguous_wg=True, nv=128):
    waves = block // 64
    L = []
    a = L.append
    a(HEADER.rstrip())
    a(f"; @launch grid=({grid},1,1) block=({block},1,1) lds=64")
    a('.amdgcn_target "amdgcn-amd-amdhsa--gfx950"')
    a(".text")
    a(f".globl {NAME}_kernel")
    a(".p2align 8")
    a(f".type {NAME}_kernel,@function")
    a(f"{NAME}_kernel:")
    a(f"  s_cmp_ge_u32 s2, {grid}")
    a("  s_cbranch_scc1 L_end")
    a("  s_memrealtime s[44:45]")
    a("  s_load_dwordx2 s[12:13], s[0:1], 0")
    a("  s_load_dwordx2 s[16:17], s[0:1], 24")
    a("  s_load_dwordx2 s[46:47], s[0:1], 40")
    a("  v_readfirstlane_b32 s3, v0")
    a("  v_and_b32 v1, 63, v0")
    a("  v_lshlrev_b32 v1, 4, v1")
    a("  s_mov_b32 s14, 0x1000000")
    a("  s_mov_b32 s15, 0x20000")
    a("  s_mov_b32 s18, 0x1000000")
    a("  s_mov_b32 s19, 0x20000")
    a(f"  s_mul_i32 s20, s2, {waves * per_wave_kib * 1024}")
    a(f"  s_lshl_b32 s21, s3, 6")
    a("  s_add_u32 s20, s20, s21")
    for q in range(1, per_wave_kib // 4):
        a(f"  s_add_u32 s{20 + q}, s20, {q * waves * 4096}")
    a("  s_lshl_b32 s48, s2, 5")
    a("  v_mov_b32 v2, s48")
    a("  s_waitcnt lgkmcnt(0)")
    a("  s_lshl_b32 s49, s3, 4")
    a("  s_add_u32 s49, s49, s2")
    a("  s_cmp_ge_u32 s49, 16")
    a("  s_cbranch_scc1 L_skip")
    a("  v_mov_b32 v3, s44")
    a("  s_mov_b64 exec, 1")
    a("  global_store_dword v2, v3, s[46:47]")
    a("  s_mov_b64 exec, -1")
    a("L_skip:")
    def so(j): return f"s{20 + j // 4}"
    def off(j): return f" offset:{(j % 4) * 1024}" if j % 4 else ""
    for op in seq:
        if op[0] == 'L':
            j = op[1]; r = 4 + 4 * (op[2] if len(op) > 2 else j)
            a(f"  buffer_load_dwordx4 v[{r}:{r+3}], v1, s[12:15], {so(j)} offen{off(j)}{ld}")
        elif op[0] == 'S':
            j = op[1]; r = 4 + 4 * (op[2] if len(op) > 2 else j)
            a(f"  buffer_store_dwordx4 v[{r}:{r+3}], v1, s[16:19], {so(j)} offen{off(j)}{st}")
        elif op[0] == 'W':
            a(f"  s_waitcnt vmcnt({op[1]})")
        elif op[0] == 'B':
            a("  s_barrier")
        elif op[0] == 'N':
            for _ in range(op[1]):
                a("  v_add_f32 v3, v3, v3")
    a("L_end:")
    a("  s_endpgm")
    a('.section .rodata,"a"')
    a(".p2align 6")
    a(f".amdhsa_kernel {NAME}_kernel")
    a(f"  .amdhsa_next_free_vgpr {nv}")
    a("  .amdhsa_next_free_sgpr 56")
    a(f"  .amdhsa_accum_offset {nv}")
    a("  .amdhsa_group_segment_fixed_size 0")
    a("  .amdhsa_kernarg_size 48")
    a("  .amdhsa_user_sgpr_count 2")
    a("  .amdhsa_user_sgpr_kernarg_segment_ptr 1")
    a("  .amdhsa_system_sgpr_workgroup_id_x 1")
    a(".end_amdhsa_kernel")
    return "\n".join(L) + "\n"

Ls = lambda g: [('L', 4*g+k) for k in range(4)]
Ss = lambda g: [('S', 4*g+k) for k in range(4)]
V = {}
V["copyb"] = gen(Ls(0) + [('W',0),('B',)] + Ss(0), nv=64)
V["nodep_ls"] = gen(Ls(0) + [('S',k,4+k) for k in range(4)] + [('W',0)], nv=64)
V["nodep_sl"] = gen([('S',k,4+k) for k in range(4)] + Ls(0) + [('W',0)], nv=64)
V["p256d2"] = gen(Ls(0)+Ls(1)+[('W',4),('B',)]+Ss(0)+Ls(2)+[('W',8),('B',)]+Ss(1)+Ls(3)+[('W',8),('B',)]+Ss(2)+[('W',4),('B',)]+Ss(3),
                  grid=256, per_wave_kib=16)
V["p256d3"] = gen(Ls(0)+Ls(1)+Ls(2)+[('W',8),('B',)]+Ss(0)+Ls(3)+[('W',12),('B',)]+Ss(1)+[('W',12),('B',)]+Ss(2)+[('W',8),('B',)]+Ss(3),
                  grid=256, per_wave_kib=16)
V["p512"] = gen(Ls(0)+[('W',0)]+Ls(1)+[('B',)]+Ss(0)+[('W',4),('B',)]+Ss(1), grid=512, per_wave_kib=8, nv=64)
if __name__ == "__main__":
    for k, s in V.items():
        open(f"f2_{k}.s", "w").write(build(s, 16, 10))
    print(" ".join(f"var/f2_{k}.s" for k in V))
```

```python
from gen2 import gen
from mk_off import build
src, nw = gen(C=4, W=4, diag=4)
src = src.replace("L_nostamp", "L_skip")
open("cal_real3.s", "w").write(build(src, 16, 10))
from floor2 import V
open("cal_copybK0.s", "w").write(build(V["copyb"], 16, 0))
```

```python
from gen2 import gen
from spin import wrap
src, nw = gen(C=4, W=4, diag=4)
open("sk_t0_16.s", "w").write(wrap(src, 0, 50, 16))
open("sk_t0_k0.s", "w").write(wrap(src, 0, 0, 16))
s = wrap(src, 0, 50, 8).replace("  v_min_u32 v0, 7, v0\n", "  v_min_u32 v0, 7, v0\n  v_max_u32 v0, 1, v0\n")
open("sk_t0_no0.s", "w").write(s)
s = wrap(src, 0, 50, 8)
open("sk_t0_8.s", "w").write(s)
```

```python
from mk_rebal import rebal, wrap
from gen2 import gen
base, nw = gen(C=4, W=4, diag=4)
anchor = "  s_load_dwordx2 s[28:29], s[4:5], s20\n"
def prioL(s):
    s = s.replace("  s_load_dwordx2 s[8:9], s[0:1], 0\n", "  s_setprio 3\n  s_load_dwordx2 s[8:9], s[0:1], 0\n", 1)
    assert anchor in s
    return s.replace(anchor, "  s_setprio 0\n" + anchor)
def prioS(s):
    return s.replace("  s_barrier\n", "  s_barrier\n  s_setprio 3\n", 1)
out = {"pl": prioL(base), "ps": prioS(base), "pl_r129": prioL(rebal(base,129)), "pl_r130": prioL(rebal(base,130)), "pl_r131": prioL(rebal(base,131)), "base": base}
for k, s in out.items():
    open(f"pr_{k}.s", "w").write(wrap(s, -1, 10, 16))
```

```python
from gen2 import gen
from spin import wrap
from mk_off import build
base, nw = gen(C=4, W=4, diag=4)
base = base.replace("L_nostamp", "L_skip")
def dropA(s, lim):
    return s.replace("  s_barrier\n", f"  s_barrier\n  s_and_b32 s90, s2, 7\n  s_cmp_lt_u32 s2, {lim}\n  s_cselect_b32 s90, s90, 1\n  s_cmp_eq_u32 s90, 0\n  s_cbranch_scc1 L_end\n", 1)
def dropG(s, n):
    old = "  s_cmp_ge_u32 s2, 1024\n  s_cbranch_scc1 L_end\n"
    return s.replace(old, old + f"  s_and_b32 s90, s2, 7\n  s_cmp_ge_u32 s2, {1024-8*n}\n  s_cselect_b32 s90, s90, 1\n  s_cmp_eq_u32 s90, 0\n  s_cbranch_scc1 L_end\n")
out = {"base": base, "A256": dropA(base,256), "A512": dropA(base,512), "G14": dropG(base,14), "G32": dropG(base,32), "G128": dropG(base,126)}
for k, s in out.items():
    open(f"dr_{k}.s", "w").write(wrap(s, -1, 0, 16))
    open(f"dro_{k}.s", "w").write(build(s, 16, 10))
```

```python
from spin import wrap
src = open("p_nt_nt.s").read()
i0 = src.index("  s_cmp_ge_u32 s2, 0x400")
i1 = src.index("  s_load_dwordx2 s[24:25], s[4:5], s22")
LOADS = """  buffer_load_dwordx4 v[4:7], v1, s[12:15], s20 offen nt
  buffer_load_dwordx4 v[8:11], v1, s[12:15], s20 offen offset:1024 nt
  buffer_load_dwordx4 v[12:15], v1, s[12:15], s20 offen offset:2048 nt
  buffer_load_dwordx4 v[16:19], v1, s[12:15], s20 offen offset:3072 nt
"""
old_pro = src[i0:i1]
new_pro = """  s_load_dwordx2 s[12:13], s[0:1], 0
  v_readfirstlane_b32 s3, v0
  s_lshr_b32 s21, s2, 10
  s_cbranch_scc1 L_end
  v_and_b32 v1, 63, v0
  v_lshlrev_b32 v1, 4, v1
  s_bfm_b32 s14, 1, 24
  s_bfm_b32 s15, 1, 17
  s_lshl_b32 s20, s2, 14
  s_lshl_b32 s21, s3, 6
  s_add_u32 s20, s20, s21
  s_waitcnt lgkmcnt(0)
""" + LOADS + """  s_load_dwordx4 s[4:7], s[0:1], 8
  s_load_dwordx2 s[16:17], s[0:1], 24
  s_mov_b32 s18, s14
  s_mov_b32 s19, s15
  s_and_b32 s22, s2, 31
  s_lshl_b32 s22, s22, 5
  s_lshr_b32 s23, s3, 3
  s_add_u32 s22, s22, s23
  s_waitcnt lgkmcnt(0)
"""
STAMP = """  s_load_dwordx2 s[86:87], s[0:1], 40
  s_lshl_b32 s88, s2, 5
  v_mov_b32 v2, s88
  s_lshl_b32 s89, s3, 4
  s_add_u32 s89, s89, s2
  s_cmp_ge_u32 s89, 16
  s_waitcnt lgkmcnt(0)
  s_cbranch_scc1 L_nostamp
  v_mov_b32 v3, s84
  s_mov_b64 exec, 1
  global_store_dword v2, v3, s[86:87]
  s_mov_b64 exec, -1
L_nostamp:
"""
def diag(s):
    s = s.replace("standalone__groupnorm__sampling_kernel:\n", "standalone__groupnorm__sampling_kernel:\n  s_memrealtime s[84:85]\n", 1)
    s = s.replace("L_end:\n", STAMP + "L_end:\n", 1)
    return s.replace("next_free_sgpr 40", "next_free_sgpr 100")
def pad(s, n):
    return s.replace("  s_waitcnt lgkmcnt(0)\n  buffer_load", "  s_nop 0\n"*(n//4) + "  s_waitcnt lgkmcnt(0)\n  buffer_load", 1)
new = src.replace(old_pro, new_pro)
open("pp_new.s", "w").write(new)
V = {"old": src, "new": new, "old_p128": pad(src,128), "old_p256": pad(src, 256)}
for k, s in V.items():
    open(f"pro_{k}.s", "w").write(wrap(diag(s), -1, 10, 16))
```
